```python
import torch

def _softmax(x, axis=-1):
    return torch.softmax(x, dim=axis)
def _gelu(x):
    return torch.nn.functional.gelu(x, approximate="tanh")
def _silu(x):
    return torch.nn.functional.silu(x)
def _sigmoid(x):
    return torch.sigmoid(x)
def _layernorm(x, axis=-1, eps=1e-5):
    m = x.mean(dim=axis, keepdim=True)
    v = x.var(dim=axis, keepdim=True, unbiased=False)
    return (x - m) / torch.sqrt(v + eps)
def _scatter_add(tgt, idx, src, axis=0):
    return tgt.clone().index_add_(axis, idx, src)
def _segment_sum(src, seg, n):
    out = torch.zeros((n,) + src.shape[1:], dtype=src.dtype)
    return out.index_add_(0, seg, src)
def _pad(x, pw):
    flat = tuple(v for pair in reversed(pw) for v in pair)
    return torch.nn.functional.pad(x, flat)

kernel_name = 'gather_scatter__cheap_equivariant_egnn__graph'

def setup_inputs():

    _w = (lambda a: (lambda t: t.to(torch.bfloat16) if t.is_floating_point() else t)(torch.as_tensor(a)))
    N, deg, D, De = 10000, 16, 128, max(4, 1)
    E = N * deg
    return {
        "h": _w((lambda *s: torch.randn(*s, dtype=torch.bfloat16) * 0.2)(N, D)),
        "pos": _w((lambda *s: torch.randn(*s, dtype=torch.bfloat16) * 0.8)(N, 3)),
        "e_attr": _w((lambda *s: torch.randn(*s, dtype=torch.bfloat16) * 0.8)(E, De)),
        "src": _w((lambda lo, hi, *s: torch.randint(lo, hi, s))(0, N, E).to(torch.int64)),
        "dst": _w((lambda lo, hi, *s: torch.randint(lo, hi, s))(0, N, E).to(torch.int64)),
        "w_e": _w(0.1 * (lambda *s: torch.randn(*s, dtype=torch.bfloat16) * 0.8)(2 * D + 1 + De, D)),
        "w_x": _w(0.1 * (lambda *s: torch.randn(*s, dtype=torch.bfloat16) * 0.2)(D, 1)),
        "w_h": _w(0.1 * (lambda *s: torch.randn(*s, dtype=torch.bfloat16) * 0.2)(2 * D, D)),
    }

def reference(h, pos, e_attr, src, dst, w_e, w_x, w_h):
    N, D = h.shape[0], h.shape[1]
    diff = pos[dst] - pos[src]
    dist2 = torch.sum(diff * diff, axis=-1, keepdims=True)
    e_in = torch.concatenate([h[dst], h[src], dist2, e_attr], axis=-1)
    m_ij = _silu(e_in @ w_e)
    coord_scale = m_ij @ w_x
    pos_new = pos + _segment_sum(diff * coord_scale, dst, N)
    m_i = _segment_sum(m_ij, dst, N)
    h_new = h + _silu(torch.concatenate([h, m_i], axis=-1) @ w_h)
    return h_new, pos_new
```

```python
L=[]
def e(s): L.append(s)
AB,CNT,OFF,RANK,PERM,MI=0,0xA00000,0xA10000,0xB00000,0xC00000,0xD00000
def srd(d,b,n):
    e(f"s_mov_b32 s{d}, s{b}\ns_mov_b32 s{d+1}, s{b+1}\ns_mov_b32 s{d+2}, {n}\ns_mov_b32 s{d+3}, 0x00020000")
def srdoff(d,b,off,n):
    e(f"s_add_u32 s{d}, s{b}, {off}\ns_addc_u32 s{d+1}, s{b+1}, 0\ns_mov_b32 s{d+2}, {n}\ns_mov_b32 s{d+3}, 0x00020000")
def head(name):
    e(f".globl {name}\n.p2align 8\n.type {name},@function\n{name}:")
    e("s_load_dwordx16 s[4:19], s[0:1], 0\ns_load_dwordx4 s[20:23], s[0:1], 64\ns_load_dwordx2 s[24:25], s[0:1], 80\ns_waitcnt lgkmcnt(0)")
def gemm(name,upd):
    head(name)
    nwg=313
    e(f"s_cmp_ge_u32 s2, {nwg}\ns_cbranch_scc1 {name}_end")
    srd(28,4,2560000)
    if upd: srdoff(32,24,MI,2560000); srd(36,18,65536); srd(40,20,2560000)
    else:
        srd(36,14,66816); srdoff(40,24,AB,10240000); srdoff(44,24,CNT,40000)
        e("s_lshl_b32 s3, s2, 7\nv_lshl_add_u32 v60, v0, 2, s3\nv_mov_b32 v61, 0\nv_cmp_gt_u32 vcc, 32, v0\ns_and_saveexec_b64 s[50:51], vcc\nbuffer_store_dword v61, v60, s[44:47], 0 offen\ns_mov_b64 exec, s[50:51]")
    e("v_and_b32 v1, 63, v0\nv_lshrrev_b32 v2, 6, v0\nv_and_b32 v3, 31, v1\nv_lshrrev_b32 v4, 5, v1")
    e("s_lshl_b32 s3, s2, 5\nv_add_u32 v5, s3, v3")
    e("v_lshlrev_b32 v6, 8, v5\nv_lshl_add_u32 v6, v4, 4, v6")
    nb=1 if upd else 2
    KS=16 if upd else 8
    for b in range(nb):
        c=10+b
        if upd: e(f"v_lshl_add_u32 v{c}, v2, 5, v3")
        else: e(f"v_lshl_add_u32 v{c}, v2, 6, v3\nv_add_u32 v{c}, {32*b}, v{c}")
        w=12+b
        if upd: e(f"v_lshlrev_b32 v{w}, 11, v4\nv_lshl_add_u32 v{w}, v{c}, 1, v{w}")
        else: e(f"v_lshrrev_b32 v{w}, 7, v{c}\nv_lshlrev_b32 v{w}, 15, v{w}\nv_lshl_add_u32 v{w}, v4, 11, v{w}\nv_and_b32 v7, 127, v{c}\nv_lshl_add_u32 v{w}, v7, 1, v{w}")
        for r in range(16): e(f"v_mov_b32 v{64+16*b+r}, 0")
    for s in range(KS):
        sr=28 if s<8 else 32
        e(f"buffer_load_dwordx4 v[20:23], v6, s[{sr}:{sr+3}], 0 offen offset:{(s%8)*32}")
        for b in range(nb):
            for j in range(8): e(f"buffer_load_ushort v{30+8*b+j}, v{12+b}, s[36:39], 0 offen offset:{j*256}")
        e("s_waitcnt vmcnt(0)")
        for b in range(nb):
            for j in range(4): e(f"v_lshl_or_b32 v{24+j}, v{31+8*b+2*j}, 16, v{30+8*b+2*j}")
            e("s_nop 2")
            e(f"v_mfma_f32_32x32x16_bf16 v[{64+16*b}:{79+16*b}], v[20:23], v[24:27], v[{64+16*b}:{79+16*b}]")
            e("s_nop 7")
        for b in range(nb): e(f"v_add_u32 v{12+b}, 4096, v{12+b}")
    e("s_nop 15\ns_nop 15")
    for b in range(nb):
        for r in range(16):
            row=8*(r//4)+(r%4)
            e(f"v_lshl_add_u32 v8, v4, 2, {row}\nv_add_u32 v8, s3, v8")
            a=64+16*b+r
            if upd:
                e(f"v_lshlrev_b32 v8, 8, v8\nv_lshl_add_u32 v8, v10, 1, v8")
                e(f"buffer_load_ushort v9, v8, s[28:31], 0 offen")
                e(f"v_cvt_pk_bf16_f32 v{a}, v{a}, v{a}\nv_lshlrev_b32 v{a}, 16, v{a}")
                e(f"v_mul_f32 v14, 0xbfb8aa3b, v{a}\nv_exp_f32 v14, v14\ns_nop 0\nv_add_f32 v14, 1.0, v14\nv_rcp_f32 v14, v14\ns_nop 0\nv_mul_f32 v14, v{a}, v14")
                e(f"v_cvt_pk_bf16_f32 v14, v14, v14\nv_lshlrev_b32 v14, 16, v14\ns_waitcnt vmcnt(0)\nv_lshlrev_b32 v9, 16, v9\nv_add_f32 v14, v9, v14\nv_cvt_pk_bf16_f32 v14, v14, v14\nbuffer_store_short v14, v8, s[40:43], 0 offen")
            else:
                e(f"v_lshlrev_b32 v8, 10, v8\nv_lshl_add_u32 v8, v{10+b}, 2, v8\nbuffer_store_dword v{a}, v8, s[40:43], 0 offen")
    e(f"{name}_end:\ns_endpgm")
def rank():
    head("k1_kernel"); srd(28,12,640000); srdoff(32,24,CNT,40000); srdoff(36,24,RANK,640000)
    e("s_lshl_b32 s3, s2, 10\nv_lshl_add_u32 v1, v0, 2, s3\ns_mov_b32 s40, 640000\nv_cmp_gt_u32 vcc, s40, v1\ns_and_saveexec_b64 s[42:43], vcc\ns_cbranch_execz k1_end")
    e("buffer_load_dword v2, v1, s[28:31], 0 offen\nv_mov_b32 v3, 1\ns_waitcnt vmcnt(0)\nv_lshlrev_b32 v2, 2, v2\nbuffer_atomic_add v3, v2, s[32:35], 0 offen sc0\ns_waitcnt vmcnt(0)\nbuffer_store_dword v3, v1, s[36:39], 0 offen")
    e("k1_end:\ns_endpgm")
def scan():
    head("k2_kernel"); e("s_cmp_ge_u32 s2, 1\ns_cbranch_scc1 k2_end")
    srdoff(32,24,CNT,40000); srdoff(36,24,OFF,40960)
    e("v_mul_u32_u24 v1, 160, v0\nv_mov_b32 v2, 0")
    for j in range(40): e(f"buffer_load_dword v{10+j}, v1, s[32:35], 0 offen offset:{4*j}")
    e("s_waitcnt vmcnt(0)")
    for j in range(40): e(f"v_add_u32 v2, v2, v{10+j}")
    e("v_lshlrev_b32 v3, 2, v0\nds_write_b32 v3, v2\ns_waitcnt lgkmcnt(0)\ns_barrier")
    e("v_mov_b32 v4, 0\nv_mov_b32 v5, 0")
    e("s_mov_b32 s40, 0\nk2_l:\nv_mov_b32 v6, s40\nv_lshlrev_b32 v7, 2, v6\nds_read_b32 v8, v7\ns_waitcnt lgkmcnt(0)\nv_cmp_lt_u32 vcc, v6, v0\ns_nop 1\nv_cndmask_b32 v8, 0, v8, vcc\nv_add_u32 v4, v4, v8\ns_add_u32 s40, s40, 1\ns_cmp_lt_u32 s40, 256\ns_cbranch_scc1 k2_l")
    for j in range(40): e(f"buffer_store_dword v4, v1, s[36:39], 0 offen offset:{4*j}\nv_add_u32 v4, v4, v{10+j}")
    e("k2_end:\ns_endpgm")
def scat():
    head("k3_kernel"); srd(28,12,640000); srdoff(32,24,OFF,40000); srdoff(36,24,RANK,640000); srdoff(44,24,PERM,640000)
    e("s_lshl_b32 s3, s2, 10\nv_lshl_add_u32 v1, v0, 2, s3\ns_mov_b32 s40, 640000\nv_cmp_gt_u32 vcc, s40, v1\ns_and_saveexec_b64 s[42:43], vcc\ns_cbranch_execz k3_end")
    e("buffer_load_dword v2, v1, s[28:31], 0 offen\nbuffer_load_dword v3, v1, s[36:39], 0 offen\ns_waitcnt vmcnt(0)\nv_lshlrev_b32 v2, 2, v2\nbuffer_load_dword v4, v2, s[32:35], 0 offen\ns_waitcnt vmcnt(0)\nv_add_lshl_u32 v4, v4, v3, 2\nv_lshrrev_b32 v5, 2, v1\nbuffer_store_dword v5, v4, s[44:47], 0 offen")
    e("k3_end:\ns_endpgm")
def up(d,s,hi):
    e(f"v_and_b32 v{d}, 0xffff0000, v{s}" if hi else f"v_lshlrev_b32 v{d}, 16, v{s}")
def rb(v): e(f"v_cvt_pk_bf16_f32 v{v}, v{v}, v{v}\nv_lshlrev_b32 v{v}, 16, v{v}")
def main():
    head("k4_kernel")
    srd(28,6,60000); srd(32,8,1280000); srd(36,10,640000); srdoff(40,24,AB,10240000); srdoff(44,24,PERM,640000)
    srd(48,14,66816); srd(52,16,256); srdoff(56,24,MI,2560000); srdoff(60,20,2560000,60000); srdoff(64,24,CNT,0x20000)
    e("v_lshrrev_b32 v1, 6, v0\ns_nop 0\nv_readfirstlane_b32 s70, v1\ns_lshl_b32 s3, s2, 2\ns_add_u32 s70, s70, s3\ns_cmp_ge_u32 s70, 10000\ns_cbranch_scc1 k4_end")
    e("v_and_b32 v1, 63, v0\nv_lshlrev_b32 v2, 3, v1\nv_lshlrev_b32 v3, 2, v1")
    e("s_lshl_b32 s71, s70, 2\nv_mov_b32 v4, s71\nbuffer_load_dword v5, v4, s[64:67], 0 offen\nbuffer_load_dword v6, v4, s[64:67], 0 offen offset:0")
    e("v_add_u32 v4, 0x10000, v4\nbuffer_load_dword v6, v4, s[64:67], 0 offen")
    e("s_lshl_b32 s72, s70, 10\nv_add_u32 v7, s72, v2\nbuffer_load_dwordx2 v[8:9], v7, s[40:43], 0 offen")
    for k in range(5): e(f"buffer_load_dword v{10+k}, v3, s[48:51], 0 offen offset:{0}" if False else f"v_add_u32 v7, {(256+k)*256}, v3\nbuffer_load_dword v{10+k}, v7, s[48:51], 0 offen")
    e("buffer_load_dword v15, v3, s[52:55], 0 offen")
    e("s_mul_i32 s73, s70, 6\nv_mov_b32 v7, s73")
    for c in range(3): e(f"buffer_load_ushort v{16+c}, v7, s[28:31], 0 offen offset:{2*c}")
    e("s_waitcnt vmcnt(0)\ns_nop 0\nv_readfirstlane_b32 s74, v5\nv_readfirstlane_b32 s75, v6")
    for k in range(5): up(20+2*k,10+k,0); up(21+2*k,10+k,1)
    up(30,15,0); up(31,15,1)
    for c in range(3): e(f"v_lshlrev_b32 v{16+c}, 16, v{16+c}")
    e("v_mov_b32 v32, 0\nv_mov_b32 v33, 0\nv_mov_b32 v34, 0\nv_mov_b32 v35, 0\nv_mov_b32 v36, 0\ns_mov_b32 s76, 0")
    e("k4_ob:\ns_cmp_ge_u32 s76, s74\ns_cbranch_scc1 k4_fin")
    e("s_add_u32 s77, s75, s76\nv_add_u32 v40, s77, v1\nv_lshlrev_b32 v40, 2, v40\nbuffer_load_dword v41, v40, s[44:47], 0 offen\ns_waitcnt vmcnt(0)")
    e("v_lshlrev_b32 v40, 2, v41\nbuffer_load_dword v42, v40, s[36:39], 0 offen\nv_lshlrev_b32 v40, 3, v41\nbuffer_load_dwordx2 v[44:45], v40, s[32:35], 0 offen\ns_waitcnt vmcnt(0)")
    e("v_mul_u32_u24 v40, 6, v42")
    for c in range(3): e(f"buffer_load_ushort v{46+c}, v40, s[28:31], 0 offen offset:{2*c}")
    e("s_waitcnt vmcnt(0)")
    for c in range(3):
        e(f"v_lshlrev_b32 v{46+c}, 16, v{46+c}\nv_sub_f32 v{46+c}, v{16+c}, v{46+c}"); rb(46+c)
        e(f"v_mul_f32 v{50+c}, v{46+c}, v{46+c}"); rb(50+c)
    e("v_add_f32 v50, v50, v51\nv_add_f32 v50, v50, v52"); rb(50)
    up(51,44,0); up(52,44,1); up(53,45,0); up(54,45,1)
    e("s_sub_u32 s78, s74, s76\ns_min_u32 s78, s78, 64\ns_mov_b32 s79, 0")
    e("k4_il:\ns_nop 0\nv_readlane_b32 s80, v42, s79")
    for i,v in enumerate([50,51,52,53,54,46,47,48]): e(f"v_readlane_b32 s{81+i}, v{v}, s79")
    e("s_lshl_b32 s80, s80, 10\ns_add_u32 s80, s80, 512\nv_add_u32 v7, s80, v2\nbuffer_load_dwordx2 v[56:57], v7, s[40:43], 0 offen\ns_waitcnt vmcnt(0)")
    for f in range(2):
        x=56+f
        e(f"v_add_f32 v{x}, v{x}, v{8+f}")
        for k in range(5): e(f"v_fma_f32 v{x}, s{81+k}, v{20+2*k+f}, v{x}")
        rb(x)
        e(f"v_mul_f32 v58, 0xbfb8aa3b, v{x}\nv_exp_f32 v58, v58\ns_nop 0\nv_add_f32 v58, 1.0, v58\nv_rcp_f32 v58, v58\ns_nop 0\nv_mul_f32 v{x}, v{x}, v58"); rb(x)
        e(f"v_add_f32 v{32+f}, v{32+f}, v{x}")
    e("v_mul_f32 v58, v56, v30\nv_fmac_f32 v58, v57, v31")
    for o in [0x041F,0x081F,0x101F,0x201F,0x401F]: e(f"ds_swizzle_b32 v59, v58 offset:{o}\ns_waitcnt lgkmcnt(0)\nv_add_f32 v58, v58, v59")
    e("s_nop 0\nv_readlane_b32 s90, v58, 0\nv_readlane_b32 s91, v58, 32\ns_nop 1\nv_mov_b32 v58, s90\nv_add_f32 v58, s91, v58"); rb(58)
    for c in range(3): e(f"v_mul_f32 v59, s{86+c}, v58"); rb(59); e(f"v_add_f32 v{34+c}, v{34+c}, v59")
    e("s_add_u32 s79, s79, 1\ns_cmp_lt_u32 s79, s78\ns_cbranch_scc1 k4_il\ns_add_u32 s76, s76, 64\ns_branch k4_ob")
    e("k4_fin:\nv_cvt_pk_bf16_f32 v32, v32, v33\ns_lshl_b32 s72, s70, 8\nv_add_u32 v7, s72, v3\nbuffer_store_dword v32, v7, s[56:59], 0 offen")
    for c in range(3):
        rb(34+c); e(f"v_add_f32 v{34+c}, v{16+c}, v{34+c}\nv_cvt_pk_bf16_f32 v{34+c}, v{34+c}, v{34+c}")
    e("v_mov_b32 v7, s73\nv_cmp_eq_u32 vcc, 0, v1\ns_and_saveexec_b64 s[92:93], vcc")
    for c in range(3): e(f"buffer_store_short v{34+c}, v7, s[60:63], 0 offen offset:{2*c}")
    e("k4_end:\ns_endpgm")
ks=[("k0_kernel",313,0,128),("k1_kernel",625,0,16),("k2_kernel",1,1024,64),("k3_kernel",625,0,16),("k4_kernel",2500,0,64),("k5_kernel",313,0,128)]
src=open('gather_scatter__cheap_equivariant_egnn__graph.s.ref').read().split('\n')
hd=[l for l in src if l.startswith(';') and '@launch' not in l]
hd+=[f"; @launch kernel={n} grid=({g},1,1) block=(256,1,1) lds={l}" for n,g,l,v in ks]
e('.amdgcn_target "amdgcn-amd-amdhsa--gfx950"\n.text')
gemm("k0_kernel",0); rank(); scan(); scat(); main(); gemm("k5_kernel",1)
e('.section .rodata,"a"')
for n,g,l,v in ks:
    e(f".p2align 6\n.amdhsa_kernel {n}\n .amdhsa_next_free_vgpr {v}\n .amdhsa_next_free_sgpr 102\n .amdhsa_accum_offset {v}\n .amdhsa_group_segment_fixed_size 0\n .amdhsa_kernarg_size 88\n .amdhsa_user_sgpr_count 2\n .amdhsa_user_sgpr_kernarg_segment_ptr 1\n .amdhsa_system_sgpr_workgroup_id_x 1\n.end_amdhsa_kernel")
open('gather_scatter__cheap_equivariant_egnn__graph.s','w').write('\n'.join(hd+L)+'\n')
```

```python
L=[]
def e(s): L.append(s)
AB,OFFS,SORT,MI=0,0xA00000,0xB00000,0xD00000
def srd(d,b,n):
    e(f"s_mov_b32 s{d}, s{b}\ns_mov_b32 s{d+1}, s{b+1}\ns_mov_b32 s{d+2}, {n}\ns_mov_b32 s{d+3}, 0x00020000")
def srdoff(d,b,off,n):
    e(f"s_add_u32 s{d}, s{b}, {off}\ns_addc_u32 s{d+1}, s{b+1}, 0\ns_mov_b32 s{d+2}, {n}\ns_mov_b32 s{d+3}, 0x00020000")
def head(name):
    e(f".globl {name}\n.p2align 8\n.type {name},@function\n{name}:")
    e("s_load_dwordx16 s[4:19], s[0:1], 0\ns_load_dwordx4 s[20:23], s[0:1], 64\ns_load_dwordx2 s[24:25], s[0:1], 80\ns_waitcnt lgkmcnt(0)")
def rb(v): e(f"v_cvt_pk_bf16_f32 v{v}, v{v}, v{v}\nv_lshlrev_b32 v{v}, 16, v{v}")
def gemm(name,upd):
    srd(28,4,2560000)
    if upd: srdoff(32,24,MI,2560000); srd(36,18,65536); srd(40,20,2560000)
    else: srd(36,14,66816); srdoff(40,24,AB,10240000)
    e("v_and_b32 v1, 63, v0\nv_lshrrev_b32 v2, 6, v0\nv_and_b32 v3, 31, v1\nv_lshrrev_b32 v4, 5, v1")
    e("s_lshl_b32 s3, s2, 5\nv_add_u32 v5, s3, v3")
    e("v_lshlrev_b32 v6, 8, v5\nv_lshl_add_u32 v6, v4, 4, v6")
    nb=1 if upd else 2
    for b in range(nb):
        c=10+b; w=12+b
        if upd: e(f"v_lshl_add_u32 v{c}, v2, 5, v3\nv_lshlrev_b32 v{w}, 11, v4\nv_lshl_add_u32 v{w}, v{c}, 1, v{w}")
        else:
            e(f"v_lshl_add_u32 v{c}, v2, 6, v3\nv_add_u32 v{c}, {32*b}, v{c}")
            e(f"v_lshrrev_b32 v{w}, 7, v{c}\nv_lshlrev_b32 v{w}, 15, v{w}\nv_lshl_add_u32 v{w}, v4, 11, v{w}\nv_and_b32 v7, 127, v{c}\nv_lshl_add_u32 v{w}, v7, 1, v{w}")
    passes=[(28,0,0),(32,0,1)] if upd else [(28,0,0),(28,1,0)]
    for r in range(16*nb): e(f"v_mov_b32 v{16+r}, 0")
    srcs=sorted(set(p[0] for p in passes))
    for i,sr in enumerate(srcs):
        for s in range(8): e(f"buffer_load_dwordx4 v[{48+32*i+4*s}:{51+32*i+4*s}], v6, s[{sr}:{sr+3}], 0 offen offset:{s*32}")
    for (sr,b,half) in passes:
        ai=srcs.index(sr)
        e(f"v_add_u32 v8, {half*32768}, v{12+b}")
        for s in range(8):
            for j in range(8): e(f"buffer_load_ushort v{112+8*s+j}, v8, s[36:39], 0 offen offset:{(s*16+j)*256 % 4096}" if (s*16+j)*256<4096 else f"buffer_load_ushort v{112+8*s+j}, v9, s[36:39], 0 offen offset:{(s*16+j)*256 % 4096}")
            if True:
                nxt=((s+1)*16*256)//4096
                e(f"v_add_u32 v9, {nxt*4096}, v8")
        e("s_waitcnt vmcnt(0)")
        for s in range(8):
            for j in range(4): e(f"v_lshl_or_b32 v{112+8*s+j}, v{113+8*s+2*j}, 16, v{112+8*s+2*j}")
        e("s_nop 2")
        for s in range(8):
            e(f"v_mfma_f32_32x32x16_bf16 v[{16+16*b}:{31+16*b}], v[{48+32*ai+4*s}:{51+32*ai+4*s}], v[{112+8*s}:{115+8*s}], v[{16+16*b}:{31+16*b}]")
        e("s_nop 15")
    e("s_nop 15")
    for b in range(nb):
        if upd:
            for r in range(16):
                row=8*(r//4)+(r%4)
                e(f"v_lshl_add_u32 v{48+r}, v4, 2, {row}\nv_add_u32 v{48+r}, s3, v{48+r}\nv_lshlrev_b32 v{48+r}, 8, v{48+r}\nv_lshl_add_u32 v{48+r}, v10, 1, v{48+r}\nbuffer_load_ushort v{64+r}, v{48+r}, s[28:31], 0 offen")
        for r in range(16):
            row=8*(r//4)+(r%4); a=16+16*b+r
            if upd:
                rb(a)
                e(f"v_mul_f32 v14, 0xbfb8aa3b, v{a}\nv_exp_f32 v14, v14\ns_nop 0\nv_add_f32 v14, 1.0, v14\nv_rcp_f32 v14, v14\ns_nop 0\nv_mul_f32 v14, v{a}, v14"); rb(14)
                if r==0: e("s_waitcnt vmcnt(0)")
                e(f"v_lshlrev_b32 v9, 16, v{64+r}\nv_add_f32 v14, v9, v14\nv_cvt_pk_bf16_f32 v14, v14, v14\nbuffer_store_short v14, v{48+r}, s[40:43], 0 offen")
            else:
                e(f"v_lshl_add_u32 v8, v4, 2, {row}\nv_add_u32 v8, s3, v8\nv_lshlrev_b32 v8, 10, v8\nv_lshl_add_u32 v8, v{10+b}, 2, v8\nbuffer_store_dword v{a}, v8, s[40:43], 0 offen")
    e("s_endpgm")
def sort():
    e("ka_sort:\ns_sub_u32 s26, s2, 313\ns_cmp_ge_u32 s26, 64\ns_cbranch_scc1 ka_end")
    srd(28,12,640000); srdoff(32,24,OFFS,1251*256); srdoff(36,24,SORT,640000)
    e("v_mov_b32 v1, 0\nv_mul_u32_u24 v2, 20, v0")
    for j in range(5): e(f"ds_write_b32 v2, v1 offset:{4*j}")
    e("s_mul_i32 s27, s26, 2500\nv_add_u32 v3, s27, v0\nv_lshlrev_b32 v4, 2, v3")
    for i in range(10):
        if i==9: e("v_cmp_gt_u32 vcc, 196, v0\ns_and_saveexec_b64 s[40:41], vcc")
        e(f"buffer_load_dword v{10+i}, v4, s[28:31], 0 offen offset:{1024*i if i<4 else 0}" if i<4 else f"v_add_u32 v5, {1024*i}, v4\nbuffer_load_dword v{10+i}, v5, s[28:31], 0 offen")
    e("s_mov_b64 exec, -1\ns_waitcnt vmcnt(0) lgkmcnt(0)\ns_barrier\nv_mov_b32 v1, 1")
    for i in range(10):
        if i==9: e("s_mov_b64 exec, s[40:41]\nv_cmp_gt_u32 vcc, 196, v0\ns_and_saveexec_b64 s[40:41], vcc")
        e(f"v_lshrrev_b32 v{10+i}, 3, v{10+i}\nv_lshlrev_b32 v{10+i}, 2, v{10+i}\nds_add_rtn_u32 v{20+i}, v{10+i}, v1")
    e("s_mov_b64 exec, -1\ns_waitcnt lgkmcnt(0)\ns_barrier")
    for j in range(5): e(f"ds_read_b32 v{30+j}, v2 offset:{4*j}")
    e("s_waitcnt lgkmcnt(0)\nv_add_u32 v35, v30, v31\nv_add_u32 v35, v35, v32\nv_add_u32 v35, v35, v33\nv_add_u32 v35, v35, v34")
    e("v_lshlrev_b32 v6, 2, v0\nv_mov_b32 v36, v35")
    for d in [1,2,4,8,16,32,64,128]:
        e(f"ds_write_b32 v6, v36 offset:5120\ns_waitcnt lgkmcnt(0)\ns_barrier")
        e(f"v_subrev_u32 v7, {4*d}, v6\nv_max_i32 v7, 0, v7\nds_read_b32 v8, v7 offset:5120\ns_waitcnt lgkmcnt(0)\ns_barrier\nv_cmp_le_u32 vcc, {d}, v0\ns_nop 1\nv_cndmask_b32 v8, 0, v8, vcc\nv_add_u32 v36, v36, v8")
    e("v_sub_u32 v36, v36, v35")
    e("s_lshl_b32 s27, s26, 2\nv_mul_u32_u24 v7, 1280, v0\nv_add_u32 v7, s27, v7")
    for j in range(5):
        e(f"ds_write_b32 v2, v36 offset:{4*j}\nbuffer_store_dword v36, v7, s[32:35], 0 offen offset:{256*j}\nv_add_u32 v36, v36, v{30+j}")
    e("s_waitcnt lgkmcnt(0)\ns_barrier")
    for i in range(10):
        if i==9: e("v_cmp_gt_u32 vcc, 196, v0\ns_and_saveexec_b64 s[40:41], vcc")
        e(f"ds_read_b32 v8, v{10+i}\nv_add_u32 v9, {256*i}, v3\ns_waitcnt lgkmcnt(0)\nv_add_u32 v8, v8, v{20+i}\ns_mul_i32 s27, s26, 2500\nv_add_u32 v8, s27, v8\nv_lshlrev_b32 v8, 2, v8\nbuffer_store_dword v9, v8, s[36:39], 0 offen")
    e("ka_end:\ns_endpgm")
def main():
    head("kb_kernel"); e("s_cmp_ge_u32 s2, 1250\ns_cbranch_scc1 kb_end")
    srd(28,6,60000); srd(32,8,1280000); srd(36,10,640000); srdoff(40,24,AB,10240000); srdoff(44,24,SORT,640000)
    srd(48,14,66816); srd(52,16,256); srdoff(56,24,MI,2560000); srdoff(60,20,2560000,60000); srdoff(64,24,OFFS,1251*256); srd(68,12,640000)
    e("v_and_b32 v1, 63, v0\nv_lshrrev_b32 v2, 6, v0\nv_and_b32 v3, 31, v1\nv_lshrrev_b32 v4, 5, v1")
    e("s_nop 0\nv_readfirstlane_b32 s72, v2")
    e("s_lshl_b32 s3, s2, 8\nv_lshl_add_u32 v5, v1, 2, s3\nbuffer_load_dword v6, v5, s[64:67], 0 offen\nbuffer_load_dword v7, v5, s[64:67], 0 offen offset:256")
    e("s_lshl_b32 s73, s72, 5\nv_add_u32 v8, s73, v3")
    e("v_lshlrev_b32 v9, 1, v8\nv_add_u32 v9, 65536, v9")
    for k in range(5): e(f"buffer_load_ushort v{100+k}, v9, s[48:51], 0 offen offset:{256*k}")
    e("s_lshl_b32 s74, s2, 13\nv_lshl_add_u32 v9, v8, 2, s74")
    for j in range(8): e(f"buffer_load_dword v{108+j}, v9, s[40:43], 0 offen offset:{(1024*j)%4096}" if j<4 else f"v_add_u32 v10, 4096, v9\nbuffer_load_dword v{108+j}, v10, s[40:43], 0 offen offset:{(1024*j)%4096}")
    e("v_lshl_add_u32 v9, v4, 2, s73\nv_lshlrev_b32 v9, 1, v9")
    for r in range(16): e(f"buffer_load_ushort v{80+r}, v9, s[52:55], 0 offen offset:{2*(8*(r//4)+r%4)}")
    e("s_waitcnt vmcnt(0)")
    e("v_sub_u32 v7, v7, v6")
    e("v_mov_b32 v10, v7")
    for d in [1,2,4,8,16,32]:
        e(f"v_subrev_u32 v11, {d}, v1\nv_max_i32 v11, 0, v11\nv_lshlrev_b32 v11, 2, v11\nds_bpermute_b32 v12, v11, v10\ns_waitcnt lgkmcnt(0)\nv_cmp_le_u32 vcc, {d}, v1\ns_nop 1\nv_cndmask_b32 v12, 0, v12, vcc\nv_add_u32 v10, v10, v12")
    e("s_nop 0\nv_readlane_b32 s75, v10, 63")
    e("v_sub_u32 v10, v10, v7\nv_lshlrev_b32 v11, 2, v1\nds_write_b32 v11, v10\nds_write_b32 v11, v6 offset:256\nv_mov_b32 v12, 0\nds_write_b32 v11, v12 offset:512")
    for r in range(16): e(f"v_lshlrev_b32 v{80+r}, 16, v{80+r}\nv_mov_b32 v{64+r}, 0")
    e("v_lshl_or_b32 v120, v101, 16, v100\nv_lshl_or_b32 v121, v103, 16, v102\nv_mov_b32 v122, v104\nv_mov_b32 v123, 0")
    for j in range(8):
        e(f"v_cvt_pk_bf16_f32 v{100+j}, v{108+j}, v{108+j}\nv_lshlrev_b32 v13, 16, v{100+j}\nv_sub_f32 v{108+j}, v{108+j}, v13\nv_and_b32 v{100+j}, 0xffff, v{100+j}")
    for j in range(4):
        e(f"v_lshl_or_b32 v13, v{101+2*j}, 16, v{100+2*j}\nv_cvt_pk_bf16_f32 v14, v{108+2*j}, v{109+2*j}\nv_cmp_eq_u32 vcc, 1, v4\ns_nop 1\nv_cndmask_b32 v{120+j}, v{120+j}, v13, vcc\nv_cndmask_b32 v{124+j}, 0, v14, vcc")
    e("v_lshl_add_u32 v15, v3, 2, 0\ns_lshl_b32 s73, s72, 7\nv_add_u32 v15, s73, v15")
    e("s_mov_b32 s76, 0")
    e("kb_batch:\ns_cmp_ge_u32 s76, s75\ns_cbranch_scc1 kb_fin\ns_waitcnt lgkmcnt(0)\ns_barrier")
    e("v_mov_b32 v16, 0\nv_mov_b32 v17, 0\nv_mov_b32 v18, 0\nv_mov_b32 v19, 0\nv_lshlrev_b32 v20, 6, v0")
    for j in range(4): e(f"ds_write_b128 v20, v[16:19] offset:{10240+16*j}")
    e("v_add_u32 v21, s76, v0\nv_mov_b32 v22, 0")
    for st in [32,16,8,4,2,1]:
        e(f"v_add_u32 v23, {st}, v22\nv_lshlrev_b32 v24, 2, v23\nds_read_b32 v25, v24\ns_waitcnt lgkmcnt(0)\nv_cmp_le_u32 vcc, v25, v21\ns_nop 1\nv_cndmask_b32 v22, v22, v23, vcc")
    e("v_lshlrev_b32 v24, 2, v22\nds_read_b32 v25, v24\nds_read_b32 v26, v24 offset:256\ns_waitcnt lgkmcnt(0)\nv_sub_u32 v25, v21, v25\nv_add_u32 v25, v25, v26\nv_mul_u32_u24 v26, 2500, v22\nv_add_lshl_u32 v25, v25, v26, 2")
    e("v_cmp_gt_u32 vcc, s75, v21\ns_nop 1\nv_cndmask_b32 v25, -4, v25, vcc\nbuffer_load_dword v27, v25, s[44:47], 0 offen\ns_waitcnt vmcnt(0)")
    e("v_lshlrev_b32 v25, 2, v27\nbuffer_load_dword v28, v25, s[36:39], 0 offen\nbuffer_load_dword v29, v25, s[68:71], 0 offen\nv_lshlrev_b32 v25, 3, v27\nbuffer_load_dwordx2 v[30:31], v25, s[32:35], 0 offen\ns_waitcnt vmcnt(0)")
    e("v_mul_u32_u24 v25, 6, v28\nv_mul_u32_u24 v26, 6, v29")
    for c in range(3): e(f"buffer_load_ushort v{32+c}, v25, s[28:31], 0 offen offset:{2*c}\nbuffer_load_ushort v{35+c}, v26, s[28:31], 0 offen offset:{2*c}")
    e("s_waitcnt vmcnt(0)")
    for c in range(3):
        e(f"v_lshlrev_b32 v{32+c}, 16, v{32+c}\nv_lshlrev_b32 v{35+c}, 16, v{35+c}\nv_sub_f32 v{32+c}, v{35+c}, v{32+c}"); rb(32+c)
        e(f"v_mul_f32 v{35+c}, v{32+c}, v{32+c}"); rb(35+c)
    e("v_add_f32 v35, v35, v36\nv_add_f32 v35, v35, v37\nv_cvt_pk_bf16_f32 v35, v35, v35\nv_and_b32 v35, 0xffff, v35")
    e("v_lshl_or_b32 v40, v30, 16, v35\nv_lshrrev_b32 v41, 16, v30\nv_lshl_or_b32 v41, v31, 16, v41\nv_lshrrev_b32 v42, 16, v31\nv_mov_b32 v43, 0")
    e("v_and_b32 v29, 7, v29")
    for j in range(4):
        e(f"v_mov_b32 v46, 0x3f80\nv_mov_b32 v47, 0x3f800000\nv_cmp_eq_u32 vcc, {2*j}, v29\ns_nop 1\nv_cndmask_b32 v{48+j}, 0, v46, vcc\nv_cmp_eq_u32 vcc, {2*j+1}, v29\ns_nop 1\nv_cndmask_b32 v{48+j}, v{48+j}, v47, vcc")
    e("v_cmp_gt_u32 vcc, s75, v21\ns_nop 1")
    for r in [40,41,42,48,49,50,51]: e(f"v_cndmask_b32 v{r}, 0, v{r}, vcc")
    e("v_lshlrev_b32 v28, 10, v28\nv_add_u32 v28, 512, v28\nv_cndmask_b32 v28, 0, v28, vcc")
    e("v_lshlrev_b32 v20, 5, v0\nds_write_b128 v20, v[40:43] offset:2048\nds_write_b128 v20, v[48:51] offset:2064\nv_lshlrev_b32 v20, 2, v0\nds_write_b32 v20, v28 offset:1024")
    e("v_and_b32 v20, 31, v0\nv_and_b32 v22, 3, v20\nv_bfe_u32 v23, v20, 2, 1\nv_lshl_add_u32 v22, v23, 3, v22\nv_bfe_u32 v23, v20, 3, 1\nv_lshl_add_u32 v22, v23, 2, v22\nv_bfe_u32 v23, v20, 4, 1\nv_lshl_add_u32 v22, v23, 4, v22")
    e("v_lshrrev_b32 v23, 5, v0\nv_lshlrev_b32 v23, 11, v23\nv_lshl_add_u32 v23, v22, 1, v23\nv_lshl_add_u32 v23, v29, 6, v23")
    e("s_waitcnt lgkmcnt(0)\ns_barrier\ns_and_saveexec_b64 s[78:79], vcc\nv_mov_b32 v46, 0x3f80\nds_write_b16 v23, v46 offset:10240")
    for c in range(3): e(f"v_lshrrev_b32 v46, 16, v{32+c}\nds_write_b16 v23, v46 offset:{10240+512*(c+1)}")
    e("s_mov_b64 exec, -1\ns_waitcnt lgkmcnt(0)\ns_barrier")
    e("s_sub_u32 s77, s75, s76\ns_min_u32 s77, s77, 256\ns_add_u32 s77, s77, 31\ns_lshr_b32 s77, s77, 5\ns_mov_b32 s80, 0")
    e("v_lshlrev_b32 v20, 4, v4\nv_lshlrev_b32 v21, 5, v3\nv_add_u32 v21, v21, v20\nv_lshlrev_b32 v22, 6, v3\nv_add_u32 v22, v22, v20")
    e("kb_tile:")
    for g in range(4): e(f"ds_read_b128 v[{32+4*g}:{35+4*g}], v20 offset:{1024+32*g}")
    e("ds_read_b128 v[24:27], v21 offset:2048\nds_read_b128 v[48:51], v22 offset:10240\nds_read_b128 v[52:55], v22 offset:10272\ns_waitcnt lgkmcnt(3)")
    for r in range(16): e(f"v_add_u32 v{32+r}, v{32+r}, v15\nbuffer_load_dword v{32+r}, v{32+r}, s[40:43], 0 offen")
    e("s_waitcnt vmcnt(0) lgkmcnt(0)\nv_mfma_f32_32x32x16_bf16 v[32:47], v[24:27], v[120:123], v[32:47]\nv_mfma_f32_32x32x16_bf16 v[32:47], v[24:27], v[124:127], v[32:47]\ns_nop 15\ns_nop 3")
    for r in range(16):
        x=32+r; t=56+(r%4)
        rb(x)
        e(f"v_mul_f32 v{t}, 0xbfb8aa3b, v{x}\nv_exp_f32 v{t}, v{t}\ns_nop 0\nv_add_f32 v{t}, 1.0, v{t}\nv_rcp_f32 v{t}, v{t}\ns_nop 0\nv_mul_f32 v{x}, v{x}, v{t}")
    for j in range(8): e(f"v_cvt_pk_bf16_f32 v{24+j if j<4 else 56+j-4}, v{32+2*j}, v{33+2*j}")
    e("s_nop 2\nv_mfma_f32_32x32x16_bf16 v[64:79], v[24:27], v[48:51], v[64:79]\nv_mfma_f32_32x32x16_bf16 v[64:79], v[56:59], v[52:55], v[64:79]")
    e("v_add_u32 v20, 128, v20\nv_add_u32 v21, 1024, v21\nv_add_u32 v22, 2048, v22\ns_add_u32 s80, s80, 1\ns_cmp_lt_u32 s80, s77\ns_cbranch_scc1 kb_tile")
    e("s_add_u32 s76, s76, 256\ns_branch kb_batch")
    e("kb_fin:\ns_nop 15\ns_nop 3\ns_waitcnt lgkmcnt(0)\ns_barrier")
    e("s_lshl_b32 s3, s2, 3\nv_add_u32 v20, s3, v3\nv_lshlrev_b32 v20, 8, v20\ns_lshl_b32 s73, s72, 6\nv_add_u32 v20, s73, v20\nv_lshl_add_u32 v20, v4, 3, v20")
    for j in range(8): e(f"v_cvt_pk_bf16_f32 v{32+j}, v{64+2*j}, v{65+2*j}")
    e("v_mul_f32 v40, v64, v80")
    for r in range(1,16): e(f"v_fmac_f32 v40, v{64+r}, v{80+r}")
    e("v_cmp_gt_u32 vcc, 8, v3\ns_and_saveexec_b64 s[78:79], vcc")
    for g in range(4): e(f"buffer_store_dwordx2 v[{32+2*g}:{33+2*g}], v20, s[56:59], 0 offen offset:{16*g}")
    e("s_mov_b64 exec, s[78:79]\nv_lshlrev_b32 v21, 2, v3\nv_cmp_le_u32 vcc, 8, v3\ns_and_saveexec_b64 s[78:79], vcc\nds_add_f32 v21, v40 offset:512\ns_mov_b64 exec, -1\ns_waitcnt lgkmcnt(0)\ns_barrier")
    e("v_cmp_le_u32 vcc, 8, v0\nv_cmp_gt_u32 s[82:83], 32, v0\ns_and_b64 vcc, vcc, s[82:83]\ns_and_saveexec_b64 s[78:79], vcc")
    e("ds_read_b32 v22, v21 offset:512\nv_and_b32 v23, 7, v0\nv_add_u32 v23, s3, v23\nv_mul_u32_u24 v23, 6, v23\nv_lshrrev_b32 v24, 3, v0\nv_add_u32 v24, -1, v24\nv_lshl_add_u32 v23, v24, 1, v23\nbuffer_load_ushort v25, v23, s[28:31], 0 offen\ns_waitcnt vmcnt(0) lgkmcnt(0)")
    rb(22); e("v_lshlrev_b32 v25, 16, v25\nv_add_f32 v22, v25, v22\nv_cvt_pk_bf16_f32 v22, v22, v22\nbuffer_store_short v22, v23, s[60:63], 0 offen")
    e("kb_end:\ns_endpgm")
ks=[("ka_kernel",377,6144,176),("kb_kernel",1250,26624,128),("kc_kernel",313,0,176)]
src=open('gather_scatter__cheap_equivariant_egnn__graph.s.ref').read().split('\n')
hd=[l for l in src if l.startswith(';') and '@launch' not in l]
hd+=[f"; @launch kernel={n} grid=({g},1,1) block=(256,1,1) lds={l}" for n,g,l,v in ks]
e('.amdgcn_target "amdgcn-amd-amdhsa--gfx950"\n.text')
head("ka_kernel"); e("s_cmp_ge_u32 s2, 313\ns_cbranch_scc1 ka_sort"); gemm("ka",0); sort()
main()
head("kc_kernel"); e("s_cmp_ge_u32 s2, 313\ns_cbranch_scc1 kc_end"); gemm("kc",1); e("kc_end:\ns_endpgm")
e('.section .rodata,"a"')
for n,g,l,v in ks:
    e(f".p2align 6\n.amdhsa_kernel {n}\n .amdhsa_next_free_vgpr {v}\n .amdhsa_next_free_sgpr 102\n .amdhsa_accum_offset {v}\n .amdhsa_group_segment_fixed_size 0\n .amdhsa_kernarg_size 88\n .amdhsa_user_sgpr_count 2\n .amdhsa_user_sgpr_kernarg_segment_ptr 1\n .amdhsa_system_sgpr_workgroup_id_x 1\n.end_amdhsa_kernel")
open('gather_scatter__cheap_equivariant_egnn__graph.s','w').write('\n'.join(hd+L)+'\n')
```

```python
L=[]
def e(s): L.append(s)
AB,OFFS,SORT,MI=0,0xA00000,0xB00000,0xE00000
def srd(d,b,n):
    e(f"s_mov_b32 s{d}, s{b}\ns_mov_b32 s{d+1}, s{b+1}\ns_mov_b32 s{d+2}, {n}\ns_mov_b32 s{d+3}, 0x00020000")
def srdoff(d,b,off,n):
    e(f"s_add_u32 s{d}, s{b}, {off}\ns_addc_u32 s{d+1}, s{b+1}, 0\ns_mov_b32 s{d+2}, {n}\ns_mov_b32 s{d+3}, 0x00020000")
def head(name):
    e(f".globl {name}\n.p2align 8\n.type {name},@function\n{name}:")
    e("s_load_dwordx16 s[4:19], s[0:1], 0\ns_load_dwordx4 s[20:23], s[0:1], 64\ns_load_dwordx2 s[24:25], s[0:1], 80\ns_waitcnt lgkmcnt(0)")
def rb(v): e(f"v_cvt_pk_bf16_f32 v{v}, v{v}, v{v}\nv_lshlrev_b32 v{v}, 16, v{v}")
def gemm(name,upd):
    srd(28,4,2560000)
    if upd: srdoff(32,24,MI,2560000); srd(36,18,65536); srd(40,20,2560000)
    else: srd(36,14,66816); srdoff(40,24,AB,10240000)
    e("v_and_b32 v1, 63, v0\nv_lshrrev_b32 v2, 6, v0\nv_and_b32 v3, 31, v1\nv_lshrrev_b32 v4, 5, v1")
    e("s_lshl_b32 s3, s2, 5\nv_add_u32 v5, s3, v3")
    e("v_lshlrev_b32 v6, 8, v5\nv_lshl_add_u32 v6, v4, 4, v6")
    nb=1 if upd else 2
    for b in range(nb):
        c=10+b; w=12+b
        if upd: e(f"v_lshl_add_u32 v{c}, v2, 5, v3\nv_lshlrev_b32 v{w}, 11, v4\nv_lshl_add_u32 v{w}, v{c}, 1, v{w}")
        else:
            e(f"v_lshl_add_u32 v{c}, v2, 6, v3\nv_add_u32 v{c}, {32*b}, v{c}")
            e(f"v_lshrrev_b32 v{w}, 7, v{c}\nv_lshlrev_b32 v{w}, 15, v{w}\nv_lshl_add_u32 v{w}, v4, 11, v{w}\nv_and_b32 v7, 127, v{c}\nv_lshl_add_u32 v{w}, v7, 1, v{w}")
    passes=[(28,0,0),(32,0,1)] if upd else [(28,0,0),(28,1,0)]
    for r in range(16*nb): e(f"v_mov_b32 v{16+r}, 0")
    srcs=sorted(set(p[0] for p in passes))
    for i,sr in enumerate(srcs):
        for s in range(8): e(f"buffer_load_dwordx4 v[{48+32*i+4*s}:{51+32*i+4*s}], v6, s[{sr}:{sr+3}], 0 offen offset:{s*32}")
    e("v_lshlrev_b32 v8, 4, v0")
    for j in range(16):
        e(f"s_mov_b32 s44, {4096*j}\nbuffer_load_dwordx4 v[{112+4*j}:{115+4*j}], v8, s[36:39], s44 offen")
    e("s_waitcnt vmcnt(0)")
    for j in range(16): e(f"ds_write_b128 v8, v[{112+4*j}:{115+4*j}] offset:{4096*j}")
    e("v_bfe_u32 v9, v1, 2, 2\nv_lshl_add_u32 v9, v4, 3, v9\nv_lshlrev_b32 v9, 8, v9\nv_bfe_u32 v14, v1, 4, 1\nv_lshl_add_u32 v9, v14, 5, v9\nv_and_b32 v14, 3, v1\nv_lshl_add_u32 v9, v14, 3, v9")
    e("s_waitcnt lgkmcnt(0)\ns_barrier")
    for (sr,b,half) in passes:
        ai=srcs.index(sr)
        if upd: e(f"v_lshl_add_u32 v8, v2, 6, v9\nv_add_u32 v8, {half*32768}, v8")
        else: e(f"v_and_b32 v14, 1, v2\nv_lshl_add_u32 v8, v14, 7, v9\nv_add_u32 v8, {64*b}, v8\nv_lshrrev_b32 v14, 1, v2\nv_lshl_add_u32 v8, v14, 15, v8")
        for s in range(8):
            e(f"ds_read_b64_tr_b16 v[{112+4*s}:{113+4*s}], v8 offset:{4096*s}\nds_read_b64_tr_b16 v[{114+4*s}:{115+4*s}], v8 offset:{4096*s+1024}")
        e("s_waitcnt vmcnt(0) lgkmcnt(0)")
        for s in range(8):
            e(f"v_mfma_f32_32x32x16_bf16 v[{16+16*b}:{31+16*b}], v[{48+32*ai+4*s}:{51+32*ai+4*s}], v[{112+4*s}:{115+4*s}], v[{16+16*b}:{31+16*b}]")
        e("s_nop 15")
    e("s_nop 15")
    for b in range(nb):
        if upd:
            for r in range(16):
                row=8*(r//4)+(r%4)
                e(f"v_lshl_add_u32 v{48+r}, v4, 2, {row}\nv_add_u32 v{48+r}, s3, v{48+r}\nv_lshlrev_b32 v{48+r}, 8, v{48+r}\nv_lshl_add_u32 v{48+r}, v10, 1, v{48+r}\nbuffer_load_ushort v{64+r}, v{48+r}, s[28:31], 0 offen")
        for r in range(16):
            row=8*(r//4)+(r%4); a=16+16*b+r
            if upd:
                rb(a)
                e(f"v_mul_f32 v14, 0xbfb8aa3b, v{a}\nv_exp_f32 v14, v14\ns_nop 0\nv_add_f32 v14, 1.0, v14\nv_rcp_f32 v14, v14\ns_nop 0\nv_mul_f32 v14, v{a}, v14"); rb(14)
                if r==0: e("s_waitcnt vmcnt(0)")
                e(f"v_lshlrev_b32 v9, 16, v{64+r}\nv_add_f32 v14, v9, v14\nv_cvt_pk_bf16_f32 v14, v14, v14\nbuffer_store_short v14, v{48+r}, s[40:43], 0 offen")
            else:
                e(f"v_lshl_add_u32 v8, v4, 2, {row}\nv_add_u32 v8, s3, v8\nv_lshlrev_b32 v8, 10, v8\nv_lshl_add_u32 v8, v{10+b}, 2, v8\nbuffer_store_dword v{a}, v8, s[40:43], 0 offen")
    e("s_endpgm")
def sort():
    e("ka_sort:\ns_sub_u32 s26, s2, 313\ns_cmp_ge_u32 s26, 64\ns_cbranch_scc1 ka_end")
    srd(28,12,640000); srdoff(32,24,OFFS,1251*256); srdoff(36,24,SORT,2560000); srd(44,10,640000); srd(48,8,1280000)
    e("v_mov_b32 v1, 0\nv_mul_u32_u24 v2, 20, v0")
    for j in range(5): e(f"ds_write_b32 v2, v1 offset:{4*j}")
    e("s_mul_i32 s27, s26, 2500\nv_add_u32 v3, s27, v0\nv_lshlrev_b32 v4, 2, v3")
    for i in range(10):
        if i==9: e("v_cmp_gt_u32 vcc, 196, v0\ns_and_saveexec_b64 s[40:41], vcc")
        e(f"buffer_load_dword v{10+i}, v4, s[28:31], 0 offen offset:{1024*i if i<4 else 0}" if i<4 else f"v_add_u32 v5, {1024*i}, v4\nbuffer_load_dword v{10+i}, v5, s[28:31], 0 offen")
        e(f"v_add_u32 v5, {1024*i}, v4\nbuffer_load_dword v{50+4*i}, v5, s[44:47], 0 offen\nbuffer_load_dword v{51+4*i}, v5, s[28:31], 0 offen\nv_lshlrev_b32 v5, 1, v5\nbuffer_load_dwordx2 v[{52+4*i}:{53+4*i}], v5, s[48:51], 0 offen")
    e("s_mov_b64 exec, -1\ns_waitcnt vmcnt(0) lgkmcnt(0)\ns_barrier\nv_mov_b32 v1, 1")
    for i in range(10):
        if i==9: e("s_mov_b64 exec, s[40:41]\nv_cmp_gt_u32 vcc, 196, v0\ns_and_saveexec_b64 s[40:41], vcc")
        e(f"v_lshrrev_b32 v{10+i}, 3, v{10+i}\nv_lshlrev_b32 v{10+i}, 2, v{10+i}\nds_add_rtn_u32 v{20+i}, v{10+i}, v1")
    e("s_mov_b64 exec, -1\ns_waitcnt lgkmcnt(0)\ns_barrier")
    for j in range(5): e(f"ds_read_b32 v{30+j}, v2 offset:{4*j}")
    e("s_waitcnt lgkmcnt(0)\nv_add_u32 v35, v30, v31\nv_add_u32 v35, v35, v32\nv_add_u32 v35, v35, v33\nv_add_u32 v35, v35, v34")
    e("v_lshlrev_b32 v6, 2, v0\nv_mov_b32 v36, v35")
    for d in [1,2,4,8,16,32,64,128]:
        e(f"ds_write_b32 v6, v36 offset:5120\ns_waitcnt lgkmcnt(0)\ns_barrier")
        e(f"v_subrev_u32 v7, {4*d}, v6\nv_max_i32 v7, 0, v7\nds_read_b32 v8, v7 offset:5120\ns_waitcnt lgkmcnt(0)\ns_barrier\nv_cmp_le_u32 vcc, {d}, v0\ns_nop 1\nv_cndmask_b32 v8, 0, v8, vcc\nv_add_u32 v36, v36, v8")
    e("v_sub_u32 v36, v36, v35")
    e("s_lshl_b32 s27, s26, 2\nv_mul_u32_u24 v7, 1280, v0\nv_add_u32 v7, s27, v7")
    for j in range(5):
        e(f"ds_write_b32 v2, v36 offset:{4*j}\nbuffer_store_dword v36, v7, s[32:35], 0 offen offset:{256*j}\nv_add_u32 v36, v36, v{30+j}")
    e("s_waitcnt lgkmcnt(0)\ns_barrier")
    for i in range(10):
        if i==9: e("v_cmp_gt_u32 vcc, 196, v0\ns_and_saveexec_b64 s[40:41], vcc")
        e(f"ds_read_b32 v8, v{10+i}\ns_waitcnt lgkmcnt(0)\nv_add_u32 v8, v8, v{20+i}\ns_mul_i32 s27, s26, 2500\nv_add_u32 v8, s27, v8\nv_lshlrev_b32 v8, 4, v8\nbuffer_store_dwordx4 v[{50+4*i}:{53+4*i}], v8, s[36:39], 0 offen")
    e("ka_end:\ns_endpgm")
def main():
    head("kb_kernel"); e("s_cmp_ge_u32 s2, 1250\ns_cbranch_scc1 kb_end")
    srd(28,6,60000); srd(32,8,1280000); srd(36,10,640000); srdoff(40,24,AB,10240000); srdoff(44,24,SORT,2560000)
    srd(48,14,66816); srd(52,16,256); srdoff(56,24,MI,2560000); srdoff(60,20,2560000,60000); srdoff(64,24,OFFS,1251*256); srd(68,12,640000)
    e("v_and_b32 v1, 63, v0\nv_lshrrev_b32 v2, 6, v0\nv_and_b32 v3, 31, v1\nv_lshrrev_b32 v4, 5, v1")
    e("s_nop 0\nv_readfirstlane_b32 s72, v2")
    e("s_lshl_b32 s3, s2, 8\nv_lshl_add_u32 v5, v1, 2, s3\nbuffer_load_dword v6, v5, s[64:67], 0 offen\nbuffer_load_dword v7, v5, s[64:67], 0 offen offset:256")
    e("s_lshl_b32 s73, s72, 5\nv_add_u32 v8, s73, v3")
    e("v_lshlrev_b32 v9, 1, v8\nv_add_u32 v9, 65536, v9")
    for k in range(5): e(f"buffer_load_ushort v{100+k}, v9, s[48:51], 0 offen offset:{256*k}")
    e("s_lshl_b32 s74, s2, 13\nv_lshl_add_u32 v9, v8, 2, s74")
    for j in range(8): e(f"buffer_load_dword v{108+j}, v9, s[40:43], 0 offen offset:{(1024*j)%4096}" if j<4 else f"v_add_u32 v10, 4096, v9\nbuffer_load_dword v{108+j}, v10, s[40:43], 0 offen offset:{(1024*j)%4096}")
    e("v_lshlrev_b32 v9, 1, v1\nbuffer_load_ushort v96, v9, s[52:55], 0 offen\nbuffer_load_ushort v97, v9, s[52:55], 0 offen offset:128")
    e("s_lshl_b32 s84, s2, 3\nv_and_b32 v99, 7, v1\nv_add_u32 v99, s84, v99\nv_mul_u32_u24 v99, 6, v99\nv_bfe_u32 v9, v1, 3, 2\nv_add_u32 v9, -1, v9\nv_max_i32 v9, 0, v9\nv_lshl_add_u32 v99, v9, 1, v99\nbuffer_load_ushort v98, v99, s[28:31], 0 offen")
    e("s_waitcnt vmcnt(0)\nv_lshlrev_b32 v96, 16, v96\nv_lshlrev_b32 v97, 16, v97\nv_lshlrev_b32 v9, 2, v1\nds_write_b32 v9, v96 offset:26624\nds_write_b32 v9, v97 offset:26880")
    e("v_sub_u32 v7, v7, v6")
    e("v_mov_b32 v10, v7")
    for d in [1,2,4,8,16,32]:
        e(f"v_subrev_u32 v11, {d}, v1\nv_max_i32 v11, 0, v11\nv_lshlrev_b32 v11, 2, v11\nds_bpermute_b32 v12, v11, v10\ns_waitcnt lgkmcnt(0)\nv_cmp_le_u32 vcc, {d}, v1\ns_nop 1\nv_cndmask_b32 v12, 0, v12, vcc\nv_add_u32 v10, v10, v12")
    e("s_nop 0\nv_readlane_b32 s75, v10, 63")
    e("v_sub_u32 v10, v10, v7\nv_lshlrev_b32 v11, 2, v1\nds_write_b32 v11, v10\nds_write_b32 v11, v6 offset:256\nv_mov_b32 v12, 0\nds_write_b32 v11, v12 offset:512")
    for r in range(16): e(f"v_mov_b32 v{64+r}, 0")
    e("v_lshl_or_b32 v120, v101, 16, v100\nv_lshl_or_b32 v121, v103, 16, v102\nv_mov_b32 v122, v104\nv_mov_b32 v123, 0")
    for j in range(8):
        e(f"v_cvt_pk_bf16_f32 v{100+j}, v{108+j}, v{108+j}\nv_lshlrev_b32 v13, 16, v{100+j}\nv_sub_f32 v{108+j}, v{108+j}, v13\nv_and_b32 v{100+j}, 0xffff, v{100+j}")
    for j in range(4):
        e(f"v_lshl_or_b32 v13, v{101+2*j}, 16, v{100+2*j}\nv_cvt_pk_bf16_f32 v14, v{108+2*j}, v{109+2*j}\nv_cmp_eq_u32 vcc, 1, v4\ns_nop 1\nv_cndmask_b32 v{120+j}, v{120+j}, v13, vcc\nv_cndmask_b32 v{124+j}, 0, v14, vcc")
    e("v_lshl_add_u32 v15, v3, 2, 0\ns_lshl_b32 s73, s72, 7\nv_add_u32 v15, s73, v15")
    e("s_mov_b32 s76, 0")
    e("kb_batch:\ns_cmp_ge_u32 s76, s75\ns_cbranch_scc1 kb_fin\ns_waitcnt lgkmcnt(0)\ns_barrier")
    e("v_mov_b32 v16, 0\nv_mov_b32 v17, 0\nv_mov_b32 v18, 0\nv_mov_b32 v19, 0\nv_lshlrev_b32 v20, 6, v0")
    for j in range(4): e(f"ds_write_b128 v20, v[16:19] offset:{10240+16*j}")
    e("v_add_u32 v21, s76, v0\nv_mov_b32 v22, 0")
    for st in [32,16,8,4,2,1]:
        e(f"v_add_u32 v23, {st}, v22\nv_lshlrev_b32 v24, 2, v23\nds_read_b32 v25, v24\ns_waitcnt lgkmcnt(0)\nv_cmp_le_u32 vcc, v25, v21\ns_nop 1\nv_cndmask_b32 v22, v22, v23, vcc")
    e("v_lshlrev_b32 v24, 2, v22\nds_read_b32 v25, v24\nds_read_b32 v26, v24 offset:256\ns_waitcnt lgkmcnt(0)\nv_sub_u32 v25, v21, v25\nv_add_u32 v25, v25, v26\nv_mul_u32_u24 v26, 2500, v22\nv_add_lshl_u32 v25, v25, v26, 4")
    e("v_cmp_gt_u32 vcc, s75, v21\ns_nop 1\nv_cndmask_b32 v25, -16, v25, vcc\nbuffer_load_dwordx4 v[28:31], v25, s[44:47], 0 offen\ns_waitcnt vmcnt(0)")
    e("v_mul_u32_u24 v25, 6, v28\nv_mul_u32_u24 v26, 6, v29")
    for c in range(3): e(f"buffer_load_ushort v{32+c}, v25, s[28:31], 0 offen offset:{2*c}\nbuffer_load_ushort v{35+c}, v26, s[28:31], 0 offen offset:{2*c}")
    e("s_waitcnt vmcnt(0)")
    for c in range(3):
        e(f"v_lshlrev_b32 v{32+c}, 16, v{32+c}\nv_lshlrev_b32 v{35+c}, 16, v{35+c}\nv_sub_f32 v{32+c}, v{35+c}, v{32+c}"); rb(32+c)
        e(f"v_mul_f32 v{35+c}, v{32+c}, v{32+c}"); rb(35+c)
    e("v_add_f32 v35, v35, v36\nv_add_f32 v35, v35, v37\nv_cvt_pk_bf16_f32 v35, v35, v35\nv_and_b32 v35, 0xffff, v35")
    e("v_lshl_or_b32 v40, v30, 16, v35\nv_lshrrev_b32 v41, 16, v30\nv_lshl_or_b32 v41, v31, 16, v41\nv_lshrrev_b32 v42, 16, v31\nv_mov_b32 v43, 0")
    e("v_and_b32 v29, 7, v29")
    for j in range(4):
        e(f"v_mov_b32 v46, 0x3f80\nv_mov_b32 v47, 0x3f800000\nv_cmp_eq_u32 vcc, {2*j}, v29\ns_nop 1\nv_cndmask_b32 v{48+j}, 0, v46, vcc\nv_cmp_eq_u32 vcc, {2*j+1}, v29\ns_nop 1\nv_cndmask_b32 v{48+j}, v{48+j}, v47, vcc")
    e("v_cmp_gt_u32 vcc, s75, v21\ns_nop 1")
    for r in [40,41,42,48,49,50,51]: e(f"v_cndmask_b32 v{r}, 0, v{r}, vcc")
    e("v_lshlrev_b32 v28, 10, v28\nv_add_u32 v28, 512, v28\nv_cndmask_b32 v28, 0, v28, vcc")
    e("v_lshlrev_b32 v20, 5, v0\nds_write_b128 v20, v[40:43] offset:2048\nds_write_b128 v20, v[48:51] offset:2064\nv_lshlrev_b32 v20, 2, v0\nds_write_b32 v20, v28 offset:1024")
    e("v_and_b32 v20, 31, v0\nv_and_b32 v22, 3, v20\nv_bfe_u32 v23, v20, 2, 1\nv_lshl_add_u32 v22, v23, 3, v22\nv_bfe_u32 v23, v20, 3, 1\nv_lshl_add_u32 v22, v23, 2, v22\nv_bfe_u32 v23, v20, 4, 1\nv_lshl_add_u32 v22, v23, 4, v22")
    e("v_lshrrev_b32 v23, 5, v0\nv_lshlrev_b32 v23, 11, v23\nv_lshl_add_u32 v23, v22, 1, v23\nv_lshl_add_u32 v23, v29, 6, v23")
    e("s_waitcnt lgkmcnt(0)\ns_barrier\ns_and_saveexec_b64 s[78:79], vcc\nv_mov_b32 v46, 0x3f80\nds_write_b16 v23, v46 offset:10240")
    for c in range(3): e(f"v_lshrrev_b32 v46, 16, v{32+c}\nds_write_b16 v23, v46 offset:{10240+512*(c+1)}")
    e("s_mov_b64 exec, -1\ns_waitcnt lgkmcnt(0)\ns_barrier")
    e("s_sub_u32 s77, s75, s76\ns_min_u32 s77, s77, 256\ns_add_u32 s77, s77, 31\ns_lshr_b32 s77, s77, 5\ns_mov_b32 s80, 0")
    e("v_lshlrev_b32 v20, 4, v4\nv_lshlrev_b32 v21, 5, v3\nv_add_u32 v21, v21, v20\nv_lshlrev_b32 v22, 6, v3\nv_add_u32 v22, v22, v20")
    def issue(base):
        for g in range(4): e(f"ds_read_b128 v[{base+4*g}:{base+3+4*g}], v20 offset:{1024+32*g}")
        e("s_waitcnt lgkmcnt(0)")
        for r in range(16): e(f"v_add_u32 v{base+r}, v{base+r}, v15\nbuffer_load_dword v{base+r}, v{base+r}, s[40:43], 0 offen")
        e("v_add_u32 v20, 128, v20")
    def comp(base,cnt):
        e(f"ds_read_b128 v[24:27], v21 offset:2048\nds_read_b128 v[48:51], v22 offset:10240\nds_read_b128 v[52:55], v22 offset:10272\ns_waitcnt vmcnt({cnt}) lgkmcnt(0)")
        e(f"v_mfma_f32_32x32x16_bf16 v[{base}:{base+15}], v[24:27], v[120:123], v[{base}:{base+15}]\nv_mfma_f32_32x32x16_bf16 v[{base}:{base+15}], v[24:27], v[124:127], v[{base}:{base+15}]\ns_nop 15\ns_nop 3")
        for r in range(16):
            x=base+r; t=60+(r%4)
            rb(x)
            e(f"v_mul_f32 v{t}, 0xbfb8aa3b, v{x}\nv_exp_f32 v{t}, v{t}\ns_nop 0\nv_add_f32 v{t}, 1.0, v{t}\nv_rcp_f32 v{t}, v{t}\ns_nop 0\nv_mul_f32 v{x}, v{x}, v{t}")
        for j in range(8): e(f"v_cvt_pk_bf16_f32 v{24+j if j<4 else 56+j-4}, v{base+2*j}, v{base+1+2*j}")
        e("s_nop 2\nv_mfma_f32_32x32x16_bf16 v[64:79], v[24:27], v[48:51], v[64:79]\nv_mfma_f32_32x32x16_bf16 v[64:79], v[56:59], v[52:55], v[64:79]")
        e("v_add_u32 v21, 1024, v21\nv_add_u32 v22, 2048, v22\ns_nop 4")
    issue(128)
    e("kb_loop:\ns_waitcnt vmcnt(0)")
    for r in range(16): e(f"v_mov_b32 v{32+r}, v{128+r}")
    e("s_add_u32 s80, s80, 1\ns_cmp_ge_u32 s80, s77\ns_cbranch_scc1 kb_ni")
    issue(128)
    e("kb_ni:")
    comp(32,63)
    e("s_cmp_lt_u32 s80, s77\ns_cbranch_scc1 kb_loop")
    e("s_add_u32 s76, s76, 256\ns_branch kb_batch")
    e("kb_fin:\ns_nop 15\ns_nop 3\ns_waitcnt lgkmcnt(0)\ns_barrier")
    e("s_lshl_b32 s3, s2, 3\nv_add_u32 v20, s3, v3\nv_lshlrev_b32 v20, 8, v20\ns_lshl_b32 s73, s72, 6\nv_add_u32 v20, s73, v20\nv_lshl_add_u32 v20, v4, 3, v20")
    for j in range(8): e(f"v_cvt_pk_bf16_f32 v{32+j}, v{64+2*j}, v{65+2*j}")
    e("s_lshl_b32 s73, s72, 7\nv_lshl_add_u32 v9, v4, 4, s73")
    for g in range(4): e(f"ds_read_b128 v[{80+4*g}:{83+4*g}], v9 offset:{26624+32*g}")
    e("s_waitcnt lgkmcnt(0)")
    e("v_mul_f32 v40, v64, v80")
    for r in range(1,16): e(f"v_fmac_f32 v40, v{64+r}, v{80+r}")
    e("v_cmp_gt_u32 vcc, 8, v3\ns_and_saveexec_b64 s[78:79], vcc")
    for g in range(4): e(f"buffer_store_dwordx2 v[{32+2*g}:{33+2*g}], v20, s[56:59], 0 offen offset:{16*g}")
    e("s_mov_b64 exec, s[78:79]\nv_lshlrev_b32 v21, 2, v3\nv_cmp_le_u32 vcc, 8, v3\ns_and_saveexec_b64 s[78:79], vcc\nds_add_f32 v21, v40 offset:512\ns_mov_b64 exec, -1\ns_waitcnt lgkmcnt(0)\ns_barrier")
    e("v_cmp_le_u32 vcc, 8, v0\nv_cmp_gt_u32 s[82:83], 32, v0\ns_and_b64 vcc, vcc, s[82:83]\ns_and_saveexec_b64 s[78:79], vcc")
    e("ds_read_b32 v22, v21 offset:512\nv_mov_b32 v23, v99\nv_mov_b32 v25, v98\ns_waitcnt lgkmcnt(0)")
    rb(22); e("v_lshlrev_b32 v25, 16, v25\nv_add_f32 v22, v25, v22\nv_cvt_pk_bf16_f32 v22, v22, v22\nbuffer_store_short v22, v23, s[60:63], 0 offen")
    e("kb_end:\ns_endpgm")
ks=[("ka_kernel",377,65536,176),("kb_kernel",1250,27136,144),("kc_kernel",313,65536,176)]
src=open('gather_scatter__cheap_equivariant_egnn__graph.s.ref').read().split('\n')
hd=[l for l in src if l.startswith(';') and '@launch' not in l]
hd+=[f"; @launch kernel={n} grid=({g},1,1) block=(256,1,1) lds={l}" for n,g,l,v in ks]
e('.amdgcn_target "amdgcn-amd-amdhsa--gfx950"\n.text')
head("ka_kernel"); e("s_cmp_ge_u32 s2, 313\ns_cbranch_scc1 ka_sort"); gemm("ka",0); sort()
main()
head("kc_kernel"); e("s_cmp_ge_u32 s2, 313\ns_cbranch_scc1 kc_end"); gemm("kc",1); e("kc_end:\ns_endpgm")
e('.section .rodata,"a"')
for n,g,l,v in ks:
    e(f".p2align 6\n.amdhsa_kernel {n}\n .amdhsa_next_free_vgpr {v}\n .amdhsa_next_free_sgpr 102\n .amdhsa_accum_offset {v}\n .amdhsa_group_segment_fixed_size 0\n .amdhsa_kernarg_size 88\n .amdhsa_user_sgpr_count 2\n .amdhsa_user_sgpr_kernarg_segment_ptr 1\n .amdhsa_system_sgpr_workgroup_id_x 1\n.end_amdhsa_kernel")
open('gather_scatter__cheap_equivariant_egnn__graph.s','w').write('\n'.join(hd+L)+'\n')
```
